```python
import torch

def _softmax(x, axis=-1):
    return torch.softmax(x, dim=axis)
def _gelu(x):
    return torch.nn.functional.gelu(x, approximate="tanh")
def _silu(x):
    return torch.nn.functional.silu(x)
def _sigmoid(x):
    return torch.sigmoid(x)
def _layernorm(x, axis=-1, eps=1e-5):
    m = x.mean(dim=axis, keepdim=True)
    v = x.var(dim=axis, keepdim=True, unbiased=False)
    return (x - m) / torch.sqrt(v + eps)
def _scatter_add(tgt, idx, src, axis=0):
    return tgt.clone().index_add_(axis, idx, src)
def _segment_sum(src, seg, n):
    out = torch.zeros((n,) + src.shape[1:], dtype=src.dtype)
    return out.index_add_(0, seg, src)
def _pad(x, pw):
    flat = tuple(v for pair in reversed(pw) for v in pair)
    return torch.nn.functional.pad(x, flat)

kernel_name = 'sequential_preLN__sliding_block__glu_gated_bilinear__prompt'

def setup_inputs():

    _w = (lambda a: (lambda t: t.to(torch.bfloat16) if t.is_floating_point() else t)(torch.as_tensor(a)))
    def _A_setup():
        B, S, D = 1, 2048, 1024
        return {
            "x": _w((lambda *s: torch.randn(*s, dtype=torch.bfloat16) * 0.05)(B, S, D)),
            "wqkv": _w((lambda *s: torch.randn(*s, dtype=torch.bfloat16) * 0.05)(D, 3 * D)),
            "wo": _w((lambda *s: torch.randn(*s, dtype=torch.bfloat16) * 0.05)(D, D)),
        }
    _A_in = _A_setup()

    def _B_setup():
        B, S, D, F = 1, 2048, 1024, 3584
        return {
            "x": _w((lambda *s: torch.randn(*s, dtype=torch.bfloat16) * 0.05)(B, S, D)),
            "w_gate": _w((lambda *s: torch.randn(*s, dtype=torch.bfloat16) * 0.8)(D, F) * (D ** -0.5)),
            "w_up": _w((lambda *s: torch.randn(*s, dtype=torch.bfloat16) * 0.8)(D, F) * (D ** -0.5)),
            "w_down": _w((lambda *s: torch.randn(*s, dtype=torch.bfloat16) * 0.8)(F, D) * (F ** -0.5)),
        }
    _B_in = _B_setup()

    return {
        "A_x": _A_in["x"],
        "A_wqkv": _A_in["wqkv"],
        "A_wo": _A_in["wo"],
        "B_x": _B_in["x"],
        "B_w_gate": _B_in["w_gate"],
        "B_w_up": _B_in["w_up"],
        "B_w_down": _B_in["w_down"],
    }

def reference(A_x, A_wqkv, A_wo, B_x, B_w_gate, B_w_up, B_w_down):
    def _A_ref(x, wqkv, wo):
        B, S, D = x.shape
        H = 32; Dh = D // H; W = 256
        qkv = (lambda x, *d: x.permute(*d))((x @ wqkv).reshape(B, S, 3, H, Dh), 2, 0, 3, 1, 4)
        q, k, v = qkv[0], qkv[1], qkv[2]
        scores = torch.einsum("bhqd,bhkd->bhqk", q, k) * (Dh ** -0.5)
        idx = torch.arange(S)
        mask = (idx[:, None] - idx[None, :] >= 0) & (idx[:, None] - idx[None, :] < W)
        scores = torch.where(mask[None, None], scores, -1e9)
        p = _softmax(scores, axis=-1)
        o = torch.einsum("bhqk,bhkd->bhqd", p, v)
        return (lambda x, *d: x.permute(*d))(o, 0, 2, 1, 3).reshape(B, S, D) @ wo

    def _B_ref(x, w_gate, w_up, w_down):
        g = torch.einsum("bsd,df->bsf", x, w_gate)
        u = torch.einsum("bsd,df->bsf", x, w_up)
        h = g * u
        return torch.einsum("bsf,fd->bsd", h, w_down)

    x = A_x
    h = x + _A_ref(_layernorm(x, axis=-1), A_wqkv, A_wo)
    h2 = h + _B_ref(_layernorm(h, axis=-1), B_w_gate, B_w_up, B_w_down)
    return h2
```

```python
KN = "sequential_preLN__sliding_block__glu_gated_bilinear__prompt"

HEADER = """; Kernarg layout for this problem (80 bytes, ptrs only, base s[0:1]):
"""

class Kernel:
    def __init__(self, name, grid, block, lds, vgpr=256, agpr=0, sgpr=102):
        self.name = name; self.grid = grid; self.block = block; self.lds = lds
        self.vgpr = vgpr; self.agpr = agpr; self.sgpr = sgpr
        self.lines = []
        self._lbl = 0
    def e(self, s=""):
        for l in s.split("\n"):
            self.lines.append("    " + l.strip() if l.strip() and not l.strip().endswith(":") else l.strip())
    def label(self, base):
        self._lbl += 1
        return f"L_{self.name}_{base}_{self._lbl}"
    def body(self):
        return "\n".join(self.lines)
    def text(self):
        return (f".globl {self.name}\n.p2align 8\n.type {self.name},@function\n{self.name}:\n"
                + self.body() + "\n")
    def desc(self):
        acc = (self.vgpr + 3) // 4 * 4
        nfv = acc + self.agpr if self.agpr else self.vgpr
        return (f".amdhsa_kernel {self.name}\n"
                f"  .amdhsa_next_free_vgpr {nfv}\n"
                f"  .amdhsa_next_free_sgpr {self.sgpr}\n"
                f"  .amdhsa_accum_offset {acc}\n"
                f"  .amdhsa_group_segment_fixed_size 0\n"
                f"  .amdhsa_kernarg_size 80\n"
                f"  .amdhsa_user_sgpr_count 2\n"
                f"  .amdhsa_user_sgpr_kernarg_segment_ptr 1\n"
                f"  .amdhsa_system_sgpr_workgroup_id_x 1\n"
                f"  .amdhsa_float_denorm_mode_32 3\n"
                f".end_amdhsa_kernel\n")

def build(kernels, launches=None):
    launches = launches or kernels
    s = HEADER
    if len(launches) == 1 and launches[0].name == KN + "_kernel":
        k = launches[0]
        s += f"; @launch grid=({k.grid},1,1) block=({k.block},1,1) lds={k.lds}\n"
    else:
        for k in launches:
            s += f"; @launch kernel={k.name} grid=({k.grid},1,1) block=({k.block},1,1) lds={k.lds}\n"
    s += '.amdgcn_target "amdgcn-amd-amdhsa--gfx950"\n.text\n'
    for k in kernels:
        s += k.text()
    s += '.section .rodata,"a"\n'
    for k in kernels:
        s += ".p2align 6\n" + k.desc()
    return s
```

```python
from asmlib import *

WS_XN  = 0
WS_QKV = 4 << 20
WS_O   = 16 << 20
WS_H1  = 20 << 20
WS_HN  = 24 << 20
WS_HID = 28 << 20
STAMP  = 200 << 20

KA = dict(x=0, wqkv=8, wo=16, bx=24, wg=32, wu=40, wd=48, out=56, dbg=64, ws=72)

def srd(e, s, base_lo, base_hi, off, nbytes):
    if off:
        e(f"s_add_u32 s{s}, s{base_lo}, {off}")
        e(f"s_addc_u32 s{s+1}, s{base_hi}, 0")
    else:
        e(f"s_mov_b32 s{s}, s{base_lo}")
        e(f"s_mov_b32 s{s+1}, s{base_hi}")
    e(f"s_mov_b32 s{s+2}, {nbytes}")
    e(f"s_mov_b32 s{s+3}, 0x20000")

def prologue(k, nwg=256, stamp=None):
    e = k.e
    e(f"""
    s_cmp_ge_u32 s2, {nwg}
    s_cbranch_scc1 L_end_{k.name}
    s_load_dwordx16 s[64:79], s[0:1], 0
    s_load_dwordx4 s[80:83], s[0:1], 64
    """)
    if stamp is not None:
        e("s_memtime s[84:85]")
        e("s_memrealtime s[86:87]")
    e(f"""
    v_lshrrev_b32 v1, 6, v0
    v_and_b32 v0, 63, v0
    s_nop 0
    v_readfirstlane_b32 s40, v1
    s_waitcnt lgkmcnt(0)
    """)
PX, PWQKV, PWO, PBX, PWG, PWU, PWD, POUT, PDBG, PWS = 64, 66, 68, 70, 72, 74, 76, 78, 80, 82

def stamp_mid(k, idx):
    k.e(f"s_memtime s[{88+4*idx}:{89+4*idx}]")
    k.e(f"s_memrealtime s[{90+4*idx}:{91+4*idx}]")

def epilogue_end(k, stamp=None):
    e = k.e
    if stamp is not None:
        e(f"""
        s_waitcnt vmcnt(0)
        s_memtime s[44:45]
        s_memrealtime s[46:47]
        s_waitcnt lgkmcnt(0)
        v_mbcnt_lo_u32_b32 v20, -1, 0
        v_mbcnt_hi_u32_b32 v20, -1, v20
        v_mov_b32 v4, s84
        v_mov_b32 v5, s88
        v_mov_b32 v6, s92
        v_mov_b32 v7, s96
        v_mov_b32 v8, s44
        v_mov_b32 v9, s86
        v_mov_b32 v10, s90
        v_mov_b32 v11, s94
        v_mov_b32 v12, s98
        v_mov_b32 v13, s46
        v_mov_b32 v14, s2
        v_mov_b32 v15, s40
        s_lshl_b32 s3, s2, 6
        s_add_u32 s3, s3, {STAMP + stamp * 16384}
        v_mov_b32 v2, s3
        v_cmp_eq_u32 vcc, 0, v20
        s_cmp_eq_u32 s40, 0
        s_cbranch_scc0 L_end_{k.name}
        s_and_saveexec_b64 s[20:21], vcc
        global_store_dwordx4 v2, v[4:7], s[{PWS}:{PWS+1}]
        global_store_dwordx4 v2, v[8:11], s[{PWS}:{PWS+1}] offset:16
        global_store_dwordx4 v2, v[12:15], s[{PWS}:{PWS+1}] offset:32
        """)
    e(f"L_end_{k.name}:")
    e("s_endpgm")

def place(fill, items, start, end):
    n = len(items)
    for i, it in enumerate(items):
        g = start + (i * (end - start)) // n
        fill.setdefault(g, []).extend(it if isinstance(it, list) else [it])

def interleave(e, ms, fill):
    for x in fill.get(-1, []): e(x)
    for i, m in enumerate(ms):
        e(m)
        for x in fill.get(i, []): e(x)

def ln_kernel(name, src, dst, stamp=None):
    k = Kernel(name, 256, 512, 0, vgpr=64, agpr=0, sgpr=102)
    e = k.e
    prologue(k, 256, stamp)
    if src == "x": srd(e, 8, PX, PX + 1, 0, 2048 * 2048)
    else: srd(e, 8, PWS, PWS + 1, src, 2048 * 2048)
    srd(e, 12, PWS, PWS + 1, dst, 2048 * 2048)
    e(f"""
    s_lshl_b32 s3, s2, 3
    s_add_u32 s3, s3, s40            ; row
    s_lshl_b32 s3, s3, 11
    v_lshlrev_b32 v1, 4, v0
    v_add_u32 v1, s3, v1
    buffer_load_dwordx4 v[4:7], v1, s[8:11], 0 offen
    buffer_load_dwordx4 v[8:11], v1, s[8:11], 0 offen offset:1024
    s_waitcnt vmcnt(0)
    """)
    for i in range(8):
        e(f"v_lshlrev_b32 v{16+2*i}, 16, v{4+i}")
        e(f"v_and_b32 v{17+2*i}, 0xffff0000, v{4+i}")
    def wave_sum(r, t):
        for ror in (8, 4, 2, 1):
            e("s_nop 1")
            e(f"v_add_f32_dpp v{r}, v{r}, v{r} row_ror:{ror} row_mask:0xf bank_mask:0xf")
        e(f"v_mov_b32 v{t}, v{r}")
        e("s_nop 1")
        e(f"v_permlane16_swap_b32 v{t}, v{r}")
        e("s_nop 1")
        e(f"v_add_f32 v{r}, v{r}, v{t}")
        e(f"v_mov_b32 v{t}, v{r}")
        e("s_nop 1")
        e(f"v_permlane32_swap_b32 v{t}, v{r}")
        e("s_nop 1")
        e(f"v_add_f32 v{r}, v{r}, v{t}")
    e("v_add_f32 v2, v16, v17")
    for i in range(2, 16): e(f"v_add_f32 v2, v2, v{16+i}")
    wave_sum(2, 3)
    e("v_mul_f32 v2, 0x3a800000, v2")
    for i in range(16): e(f"v_sub_f32 v{16+i}, v{16+i}, v2")
    e("v_mul_f32 v2, v16, v16")
    for i in range(1, 16): e(f"v_fmac_f32 v2, v{16+i}, v{16+i}")
    wave_sum(2, 3)
    e("v_mov_b32 v3, 0x3727c5ac")
    e("v_fmac_f32 v3, 0x3a800000, v2")
    e("v_rsq_f32 v3, v3")
    e("s_nop 0")
    for i in range(16): e(f"v_mul_f32 v{16+i}, v{16+i}, v3")
    for i in range(8): e(f"v_cvt_pk_bf16_f32 v{4+i}, v{16+2*i}, v{17+2*i}")
    e("buffer_store_dwordx4 v[4:7], v1, s[12:15], 0 offen")
    e("buffer_store_dwordx4 v[8:11], v1, s[12:15], 0 offen offset:1024")
    epilogue_end(k, stamp)
    return k

def lc_gemm(name, kind, opt, stamp=None):
    if kind == "qkv":
        BN, K, NS = 192, 1024, opt.get("NS", 4)
        xsrc, ldx = WS_XN, 2048
        wptr, ldw, wrows = PWQKV, 6144, 1024
    elif kind == "wo":
        BN, K, NS = 64, 1024, opt.get("NS", 6)
        xsrc, ldx = WS_O, 2048
        wptr, ldw, wrows = PWO, 2048, 1024
    elif kind == "down":
        BN, K, NS = 64, 3584, opt.get("NS", 6)
        xsrc, ldx = WS_HID, 7168
        wptr, ldw, wrows = PWD, 2048, 3584
    P = BN // 8
    NT = BN // 32
    XB = 128 * 128; WB = 64 * P * 16
    SB = XB + WB
    nIt = K // 64
    nX, nW = 4, P // 4
    k = Kernel(name, 256, 512, NS * SB, vgpr=128, agpr=128, sgpr=102)
    e = k.e
    prologue(k, 256, stamp)
    e(f"""
    s_and_b32 s3, s2, 7
    s_lshr_b32 s4, s2, 3
    s_and_b32 s5, s3, 3
    s_lshl_b32 s5, s5, 2
    s_and_b32 s6, s4, 3
    s_add_u32 s41, s5, s6            ; bi
    s_lshr_b32 s5, s3, 2
    s_lshl_b32 s5, s5, 3
    s_lshr_b32 s6, s4, 2
    s_add_u32 s42, s5, s6            ; bj
    """)
    srd(e, 8, PWS, PWS + 1, xsrc, 2048 * ldx)
    srd(e, 12, wptr, wptr + 1, 0, wrows * ldw)
    e(f"""
    s_cmp_ge_u32 s40, 4
    s_cbranch_scc1 L_loader_{name}
    """)
    ACC = lambda tf, t: (t * 4 + tf) * 4
    NA = 16 * NT
    vXr0, vXr1 = 100, 101
    vWr = list(range(102, 102 + NT))
    t0, t1, t2, t3, t4 = 110, 111, 112, 113, 114
    AX = lambda buf, tf: buf * 16 + tf * 4
    AW = lambda buf, t: 32 + buf * (4 * NT) + t * 4
    e(f"""
    s_lshr_b32 s43, s40, 1            ; wm
    s_and_b32 s44, s40, 1             ; wn
    v_mov_b32 v99, v0
    v_and_b32 v{t0}, 15, v0
    v_lshrrev_b32 v{t1}, 4, v0
    v_lshrrev_b32 v{t2}, 1, v{t0}
    v_xor_b32 v{t2}, v{t2}, v{t1}
    s_lshl_b32 s3, s43, 6
    v_add_u32 v{t0}, s3, v{t0}
    v_lshlrev_b32 v{t0}, 7, v{t0}
    v_lshl_add_u32 v{vXr0}, v{t2}, 4, v{t0}
    v_xor_b32 v{vXr1}, 64, v{vXr0}
    v_lshrrev_b32 v{t0}, 5, v0
    v_lshlrev_b32 v{t0}, 4, v{t0}
    v_bfe_u32 v{t1}, v0, 4, 1
    v_lshl_add_u32 v{t0}, v{t1}, 2, v{t0}
    v_bfe_u32 v{t1}, v0, 2, 2
    v_add_u32 v{t0}, v{t0}, v{t1}           ; rho0
    v_bfe_u32 v{t1}, v{t0}, 1, 2            ; s
    v_mul_u32_u24 v{t0}, {P*16}, v{t0}
    v_and_b32 v{t2}, 1, v0
    v_lshl_add_u32 v{t0}, v{t2}, 3, v{t0}   ; + (c&1)*8
    v_bfe_u32 v{t2}, v0, 1, 1               ; h = c>>1
    v_lshl_add_u32 v{t0}, v{t2}, 4, v{t0}   ; + h*16
    v_add_u32 v{t0}, {XB}, v{t0}
    """)
    for tt in range(NT):
        e(f"""
        s_mul_i32 s3, s44, {NT}
        s_add_u32 s3, s3, {tt}
        v_xor_b32 v{t2}, s3, v{t1}
        v_lshl_add_u32 v{vWr[tt]}, v{t2}, 5, v{t0}
        """)
    for i in range(NA): e(f"v_mov_b32 v{i}, 0")
    def rdX(buf, s, tf):
        return f"ds_read_b128 a[{AX(buf,tf)}:{AX(buf,tf)+3}], v{vXr0 if s == 0 else vXr1} offset:{tf*2048}"
    def rdW(buf, s, t, h):
        b = AW(buf, t) + 2 * h
        return f"ds_read_b64_tr_b16 a[{b}:{b+1}], v{vWr[t]} offset:{(s*32 + h*8) * P * 16}"
    def reads(buf, s):
        r = [rdX(buf, s, tf) for tf in range(4)]
        for t in range(NT): r += [rdW(buf, s, t, 0), rdW(buf, s, t, 1)]
        return r
    def mfmas(buf):
        r = []
        for t in range(NT):
            for tfi in range(4):
                tf = tfi if t % 2 == 0 else 3 - tfi
                a = ACC(tf, t)
                r.append(f"v_mfma_f32_16x16x32_bf16 v[{a}:{a+3}], a[{AW(buf,t)}:{AW(buf,t)+3}], a[{AX(buf,tf)}:{AX(buf,tf)+3}], v[{a}:{a+3}]")
        return r
    def rot():
        r = [f"s_add_u32 s45, s45, {SB}", f"s_cmp_ge_u32 s45, {SB*NS}", f"s_cselect_b32 s3, {SB*NS}, 0",
             f"s_sub_u32 s45, s45, s3", f"s_sub_u32 s3, {SB}, s3",
             f"v_add_u32 v{vXr0}, s3, v{vXr0}", f"v_add_u32 v{vXr1}, s3, v{vXr1}"]
        r += [f"v_add_u32 v{v}, s3, v{v}" for v in vWr]
        return r
    NM = 4 * NT
    e("s_mov_b32 s45, 0")
    e("s_mov_b32 s46, 0")
    if kind != "qkv":
        if kind == "wo":
            srd(e, 16, PX, PX + 1, 0, 2048 * 2048); srd(e, 20, PWS, PWS + 1, WS_H1, 2048 * 2048)
        else:
            srd(e, 16, PWS, PWS + 1, WS_H1, 2048 * 2048); srd(e, 20, POUT, POUT + 1, 0, 2048 * 2048)
        e(f"""
        v_and_b32 v{t0}, 15, v99
        s_lshl_b32 s3, s41, 7
        s_lshl_b32 s4, s43, 6
        s_add_u32 s3, s3, s4
        v_add_u32 v{t0}, s3, v{t0}             ; token
        v_lshlrev_b32 v{t0}, 11, v{t0}
        v_lshrrev_b32 v{t1}, 4, v99
        v_and_b32 v{t2}, 1, v{t1}
        v_lshrrev_b32 v{t1}, 1, v{t1}
        v_lshl_add_u32 v{t0}, v{t2}, 5, v{t0}
        v_lshl_add_u32 v{t0}, v{t1}, 4, v{t0}
        s_lshl_b32 s3, s42, 7                  ; bj*64*2
        s_lshl_b32 s4, s44, 6                  ; wn*32*2
        s_add_u32 s3, s3, s4
        v_add_u32 v98, s3, v{t0}
        """)
        for tf in range(4):
            e(f"s_mov_b32 s3, {tf*16*2048}")
            e(f"buffer_load_dwordx4 v[{64+4*tf}:{67+4*tf}], v98, s[16:19], s3 offen")
    e("s_barrier")
    if stamp is not None: stamp_mid(k, 0)
    for x in reads(0, 0): e(x)
    e("s_waitcnt lgkmcnt(0)")
    RD = max(1, NM - max(2, NM // 4))
    def c_iter(last):
        fill = {}
        place(fill, reads(1, 1), 0, RD)
        interleave(e, mfmas(0), fill)
        e("s_waitcnt lgkmcnt(0)")
        e("s_barrier")
        fill = {}
        if not last:
            fill[-1] = rot()
            place(fill, reads(0, 0), 0, RD)
        interleave(e, mfmas(1), fill)
        if not last: e("s_waitcnt lgkmcnt(0)")
    L = k.label("cloop")
    e(f"{L}:")
    c_iter(False)
    e(f"s_add_u32 s46, s46, 1\ns_cmp_lt_u32 s46, {nIt-1}\ns_cbranch_scc1 {L}")
    c_iter(True)
    if stamp is not None: stamp_mid(k, 1)
    e("s_nop 7")
    if kind == "qkv":
        srd(e, 16, PWS, PWS + 1, WS_QKV, 12 << 20)
        e(f"""
        v_and_b32 v{t0}, 15, v99
        s_lshl_b32 s3, s41, 7
        s_lshl_b32 s4, s43, 6
        s_add_u32 s3, s3, s4
        v_add_u32 v{t0}, s3, v{t0}             ; token
        v_lshlrev_b32 v{t0}, 6, v{t0}          ; *64 B
        v_lshrrev_b32 v{t1}, 4, v99
        v_and_b32 v{t2}, 1, v{t1}
        v_lshrrev_b32 v{t1}, 1, v{t1}
        v_lshl_add_u32 v{t0}, v{t2}, 5, v{t0}
        v_lshl_add_u32 v98, v{t1}, 4, v{t0}
        """)
        PP = [116, 120, 124]
        pi = 0
        for p in range(3):
            e(f"""
            s_mul_i32 s3, s44, 3
            s_add_u32 s3, s3, {p}
            s_lshr_b32 s4, s3, 1                ; part
            s_and_b32 s3, s3, 1
            s_lshl_b32 s5, s42, 1
            s_add_u32 s3, s3, s5                ; head
            s_lshl_b32 s4, s4, 5
            s_add_u32 s3, s3, s4
            s_lshl_b32 s47, s3, 17              ; * 2048*64
            """)
            for tf in range(4):
                Pq = PP[pi % 3]; pi += 1
                a = ACC(tf, 2 * p); b = ACC(tf, 2 * p + 1)
                e(f"v_cvt_pk_bf16_f32 v{Pq}, v{a}, v{a+1}")
                e(f"v_cvt_pk_bf16_f32 v{Pq+1}, v{a+2}, v{a+3}")
                e(f"v_cvt_pk_bf16_f32 v{Pq+2}, v{b}, v{b+1}")
                e(f"v_cvt_pk_bf16_f32 v{Pq+3}, v{b+2}, v{b+3}")
                e("s_nop 1")
                e(f"v_permlane16_swap_b32 v{Pq}, v{Pq+2}")
                e(f"v_permlane16_swap_b32 v{Pq+1}, v{Pq+3}")
                e(f"s_add_u32 s3, s47, {tf*16*64}")
                e(f"buffer_store_dwordx4 v[{Pq}:{Pq+3}], v98, s[16:19], s3 offen")
    else:
        e("s_waitcnt vmcnt(0)")
        for tf in range(4):
            a = ACC(tf, 0); b = ACC(tf, 1); R = 64 + 4 * tf
            for r in range(4): e(f"v_permlane16_swap_b32 v{a+r}, v{b+r}")
            e(f"v_lshlrev_b32 v{t0}, 16, v{R}");     e(f"v_and_b32 v{t1}, 0xffff0000, v{R}")
            e(f"v_lshlrev_b32 v{t2}, 16, v{R+1}");   e(f"v_and_b32 v{t3}, 0xffff0000, v{R+1}")
            if kind == "wo" or True:
                e(f"v_add_f32 v{a}, v{a}, v{t0}"); e(f"v_add_f32 v{a+1}, v{a+1}, v{t1}")
                e(f"v_add_f32 v{a+2}, v{a+2}, v{t2}"); e(f"v_add_f32 v{a+3}, v{a+3}, v{t3}")
            e(f"v_lshlrev_b32 v{t0}, 16, v{R+2}");   e(f"v_and_b32 v{t1}, 0xffff0000, v{R+2}")
            e(f"v_lshlrev_b32 v{t2}, 16, v{R+3}");   e(f"v_and_b32 v{t3}, 0xffff0000, v{R+3}")
            e(f"v_add_f32 v{b}, v{b}, v{t0}"); e(f"v_add_f32 v{b+1}, v{b+1}, v{t1}")
            e(f"v_add_f32 v{b+2}, v{b+2}, v{t2}"); e(f"v_add_f32 v{b+3}, v{b+3}, v{t3}")
            e(f"v_cvt_pk_bf16_f32 v{R}, v{a}, v{a+1}")
            e(f"v_cvt_pk_bf16_f32 v{R+1}, v{a+2}, v{a+3}")
            e(f"v_cvt_pk_bf16_f32 v{R+2}, v{b}, v{b+1}")
            e(f"v_cvt_pk_bf16_f32 v{R+3}, v{b+2}, v{b+3}")
            e(f"s_mov_b32 s3, {tf*16*2048}")
            e(f"buffer_store_dwordx4 v[{R}:{R+3}], v98, s[20:23], s3 offen")
    if stamp is not None: stamp_mid(k, 2)
    e(f"s_branch L_fin_{name}")
    e(f"L_loader_{name}:")
    vDX = list(range(4, 8)); vDW = list(range(8, 8 + nW))
    e(f"""
    s_sub_u32 s43, s40, 4              ; lw
    v_lshrrev_b32 v{t0}, 3, v0
    v_lshrrev_b32 v{t1}, 4, v0
    v_and_b32 v{t2}, 7, v0
    v_xor_b32 v{t2}, v{t2}, v{t1}
    s_lshl_b32 s3, s41, 7
    s_lshl_b32 s4, s43, 5
    s_add_u32 s3, s3, s4
    v_add_u32 v{t0}, s3, v{t0}
    s_mov_b32 s4, {ldx}
    v_mul_lo_u32 v{t0}, v{t0}, s4
    v_lshl_add_u32 v{t0}, v{t2}, 4, v{t0}
    v_xor_b32 v{t1}, 64, v{t0}
    """)
    for q in range(4):
        e(f"v_add_u32 v{vDX[q]}, {q*8*ldx - 1024*q}, v{t0 if q % 2 == 0 else t1}")
    for q in range(nW):
        e(f"""
        s_mul_i32 s3, s43, {nW*64}
        s_add_u32 s3, s3, {64*q}
        v_add_u32 v{t0}, s3, v0                 ; c
        """)
        if P == 8:
            e(f"v_lshrrev_b32 v{t1}, 3, v{t0}\nv_and_b32 v{t2}, 7, v{t0}")
        else:
            e(f"s_mov_b32 s4, 2731\nv_mul_u32_u24 v{t1}, s4, v{t0}\nv_lshrrev_b32 v{t1}, 16, v{t1}\nv_mul_u32_u24 v{t2}, 24, v{t1}\nv_sub_u32 v{t2}, v{t0}, v{t2}")
        e(f"""
        v_bfe_u32 v{t3}, v{t1}, 1, 2
        v_lshlrev_b32 v{t3}, 1, v{t3}
        v_xor_b32 v{t2}, v{t2}, v{t3}           ; j
        v_and_b32 v{t3}, 4, v{t1}
        v_lshlrev_b32 v{t3}, 1, v{t3}
        v_and_b32 v{t0}, 8, v{t1}
        v_lshrrev_b32 v{t0}, 1, v{t0}
        v_or_b32 v{t3}, v{t3}, v{t0}
        v_and_b32 v{t1}, 0x33, v{t1}
        v_or_b32 v{t1}, v{t1}, v{t3}            ; k
        s_mov_b32 s4, {ldw}
        v_mul_lo_u32 v{t1}, v{t1}, s4
        """)
        if P == 8:
            e(f"v_lshl_add_u32 v{t1}, v{t2}, 4, v{t1}")
        else:
            e(f"""
            v_lshrrev_b32 v{t3}, 3, v{t2}        ; segment (q,k,v)
            v_lshlrev_b32 v{t3}, 11, v{t3}       ; *2048 B
            v_add_u32 v{t1}, v{t1}, v{t3}
            v_and_b32 v{t2}, 7, v{t2}
            v_lshl_add_u32 v{t1}, v{t2}, 4, v{t1}
            """)
        e(f"""
        s_lshl_b32 s3, s42, 7                    ; bj*128 B
        v_add_u32 v{t1}, s3, v{t1}
        v_add_u32 v{vDW[q]}, {(-1024*(q&3)) & 0xffffffff}, v{t1}
        """)
    e(f"""
    s_lshl_b32 s47, s43, 12
    s_mul_i32 s48, s43, {nW*1024}
    s_add_u32 s48, s48, {XB}
    s_mov_b32 s49, 0
    s_mov_b32 s50, 0                        ; kx
    s_mov_b32 s51, 0                        ; kw
    """)
    def l_stage():
        e("s_add_u32 m0, s49, s47")
        e("s_nop 0")
        for q in range(4):
            e(f"buffer_load_dwordx4 v{vDX[q]}, s[8:11], s50 offen offset:{1024*q} lds")
        for q in range(nW):
            if q % 4 == 0:
                e(f"s_add_u32 s3, s49, s48")
                e(f"s_add_u32 m0, s3, {4096*(q//4)}")
                e("s_nop 0")
            e(f"buffer_load_dwordx4 v{vDW[q]}, s[12:15], s51 offen offset:{1024*(q&3)} lds")
        e(f"""
        s_add_u32 s50, s50, 128
        s_add_u32 s51, s51, {64*ldw}
        s_add_u32 s49, s49, {SB}
        s_cmp_ge_u32 s49, {SB*NS}
        s_cselect_b32 s3, {SB*NS}, 0
        s_sub_u32 s49, s49, s3
        """)
    nd = nX + nW
    for st in range(NS): l_stage()
    e(f"s_waitcnt vmcnt({min(63,(NS-1)*nd)})")
    e("s_barrier")
    e("s_mov_b32 s46, 0")
    L = k.label("lloop")
    e(f"{L}:")
    e(f"s_waitcnt vmcnt({min(63,(NS-2)*nd)})")
    e("s_barrier")
    l_stage()
    e(f"s_add_u32 s46, s46, 1\ns_cmp_lt_u32 s46, {nIt-NS}\ns_cbranch_scc1 {L}")
    for i in range(nIt - NS, nIt):
        rem = max(0, (nIt - 1) - (i + 1))
        e(f"s_waitcnt vmcnt({min(63, rem*nd)})")
        e("s_barrier")
    e(f"L_fin_{name}:")
    epilogue_end(k, stamp)
    return k

def attn_kernel(name, opt, stamp=None):
    KVB = 384 * 64
    k = Kernel(name, 256, 512, 4 * KVB, vgpr=256, agpr=0, sgpr=102)
    e = k.e
    prologue(k, 256, stamp)
    e(f"""
    s_and_b32 s3, s2, 7
    s_lshr_b32 s4, s2, 3
    s_and_b32 s5, s3, 3
    s_lshl_b32 s5, s5, 2
    s_and_b32 s6, s4, 3
    s_add_u32 s41, s5, s6
    s_lshr_b32 s5, s3, 2
    s_lshl_b32 s5, s5, 3
    s_lshr_b32 s6, s4, 2
    s_add_u32 s42, s5, s6
    s_and_b32 s43, s40, 1            ; hh
    s_lshr_b32 s44, s40, 1           ; qgroup (0..3)
    """)
    srd(e, 8, PWS, PWS + 1, WS_QKV, 12 << 20)
    srd(e, 12, PWS, PWS + 1, WS_O, 2048 * 2048)
    t0, t1, t2, t3, t4 = 250, 251, 252, 253, 254
    e(f"""
    s_lshr_b32 s45, s40, 1             ; tile
    s_lshr_b32 s3, s45, 1              ; 0=K 1=V
    s_add_u32 s4, s3, 1                ; part
    s_lshl_b32 s4, s4, 5
    s_and_b32 s5, s45, 1
    s_add_u32 s4, s4, s5
    s_lshl_b32 s5, s42, 1
    s_add_u32 s4, s4, s5
    s_lshl_b32 s46, s4, 17
    v_lshrrev_b32 v{t0}, 2, v0
    v_lshrrev_b32 v{t1}, 4, v0         ; (row>>2)&3
    v_sub_u32 v{t2}, 0, v{t1}
    v_and_b32 v{t2}, 3, v{t2}          ; fK
    v_and_b32 v{t3}, 1, v{t1}
    v_lshlrev_b32 v{t3}, 1, v{t3}      ; fV
    s_cmp_eq_u32 s3, 0
    s_cselect_b64 vcc, -1, 0
    v_cndmask_b32 v{t2}, v{t3}, v{t2}, vcc
    v_and_b32 v{t3}, 3, v0
    v_xor_b32 v{t2}, v{t2}, v{t3}      ; chunk
    s_and_b32 s3, s40, 1
    s_mul_i32 s3, s3, 192
    s_lshl_b32 s4, s41, 7
    s_add_u32 s3, s3, s4
    s_sub_u32 s3, s3, 256
    v_add_u32 v{t0}, s3, v{t0}         ; token
    v_lshlrev_b32 v{t1}, 6, v{t0}
    v_lshl_add_u32 v{t1}, v{t2}, 4, v{t1}
    v_add_u32 v{t1}, s46, v{t1}
    s_mul_i32 s47, s45, {KVB}
    s_and_b32 s3, s40, 1
    s_mul_i32 s3, s3, {12*1024}
    s_add_u32 s47, s47, s3
    s_mov_b32 s48, 0x7ff00000
    """)
    for q in range(12):
        e(f"""
        v_add_u32 v{t2}, {16*q}, v{t0}
        v_cmp_gt_i32 vcc, 0, v{t2}
        v_add_u32 v{t3}, {1024*q}, v{t1}
        v_mov_b32 v{t4}, s48
        v_cndmask_b32 v{t3}, v{t3}, v{t4}, vcc
        s_add_u32 m0, s47, {1024*q}
        s_nop 0
        buffer_load_dwordx4 v{t3}, s[8:11], 0 offen lds
        """)
    QF = 240
    e(f"""
    s_lshl_b32 s3, s42, 1
    s_add_u32 s3, s3, s43              ; head
    s_lshl_b32 s49, s3, 17
    s_lshl_b32 s3, s41, 7
    s_lshl_b32 s4, s44, 5
    s_add_u32 s50, s3, s4
    v_and_b32 v{t0}, 15, v0
    v_add_u32 v{t0}, s50, v{t0}
    v_lshlrev_b32 v{t0}, 6, v{t0}
    v_lshrrev_b32 v{t1}, 4, v0
    v_lshl_add_u32 v{t0}, v{t1}, 4, v{t0}
    buffer_load_dwordx4 v[{QF}:{QF+3}], v{t0}, s[8:11], s49 offen
    buffer_load_dwordx4 v[{QF+4}:{QF+7}], v{t0}, s[8:11], s49 offen offset:1024
    """)
    vK, vV = 248, 249
    e(f"""
    v_and_b32 v{t0}, 15, v0
    v_lshrrev_b32 v{t1}, 2, v{t0}
    v_sub_u32 v{t1}, 0, v{t1}
    v_and_b32 v{t1}, 3, v{t1}
    v_lshrrev_b32 v{t2}, 4, v0
    v_xor_b32 v{t1}, v{t1}, v{t2}
    v_lshlrev_b32 v{t0}, 6, v{t0}
    v_lshl_add_u32 v{t0}, v{t1}, 4, v{t0}
    s_mul_i32 s3, s43, {KVB}
    s_lshl_b32 s4, s44, 11              ; qg*32*64
    s_add_u32 s3, s3, s4
    v_add_u32 v{vK}, s3, v{t0}
    v_lshrrev_b32 v{t0}, 2, v0          ; 4g + r
    v_lshlrev_b32 v{t0}, 6, v{t0}
    v_bfe_u32 v{t1}, v0, 4, 1           ; g&1 = (row>>2)&1
    v_lshlrev_b32 v{t1}, 1, v{t1}
    v_bfe_u32 v{t2}, v0, 1, 1           ; c>>1
    v_xor_b32 v{t1}, v{t1}, v{t2}
    v_lshl_add_u32 v{t0}, v{t1}, 4, v{t0}
    v_and_b32 v{t1}, 1, v0
    v_lshl_add_u32 v{t0}, v{t1}, 3, v{t0}
    s_add_u32 s3, s3, {2*KVB}
    v_add_u32 v{vV}, s3, v{t0}
    v_xor_b32 v{t4}, 32, v{vV}
    ; masks: M_r = (4g + r > j)
    v_and_b32 v{t0}, 15, v0
    v_lshrrev_b32 v{t1}, 4, v0
    v_lshlrev_b32 v{t1}, 2, v{t1}
    """)
    vV1 = 255
    e(f"v_mov_b32 v{vV1}, v{t4}")
    for r in range(4):
        e(f"v_add_u32 v{t2}, {r}, v{t1}")
        e(f"v_cmp_gt_u32 s[{52+2*r}:{53+2*r}], v{t2}, v{t0}")
    e("s_waitcnt vmcnt(0)")
    e("s_barrier")
    if stamp is not None: stamp_mid(k, 0)
    S = lambda qt, b: qt * 72 + b * 4
    KF = lambda i: 144 + 4 * (i % 6)
    def rdK(bp): return f"ds_read_b128 v[{KF(bp)}:{KF(bp)+3}], v{vK} offset:{bp*1024}"
    for bp in range(5): e(rdK(bp))
    for bp in range(18):
        if bp + 5 < 18: e(rdK(bp + 5))
        e(f"s_waitcnt lgkmcnt({min(5, 17-bp)})")
        for qt in range(2):
            if (qt == 0 and bp <= 16) or (qt == 1 and bp >= 1):
                d = S(qt, bp)
                e(f"v_mfma_f32_16x16x32_bf16 v[{d}:{d+3}], v[{KF(bp)}:{KF(bp)+3}], v[{QF+4*qt}:{QF+4*qt+3}], 0")
    VF = lambda p, dt: 168 + ((p % 4) * 2 + dt) * 4
    def rdV(p):
        r = []
        for dt in range(2):
            a = vV if dt == 0 else vV1
            r.append(f"ds_read_b64_tr_b16 v[{VF(p,dt)}:{VF(p,dt)+1}], v{a} offset:{(2*p)*1024}")
            r.append(f"ds_read_b64_tr_b16 v[{VF(p,dt)+2}:{VF(p,dt)+3}], v{a} offset:{(2*p+1)*1024}")
        return r
    for p in range(3):
        for x in rdV(p): e(x)
    e("s_nop 7")
    NEG = "0xf149f2ca"
    e(f"v_mov_b32 v{t4}, {NEG}")
    for qt in range(2):
        f = S(qt, 0 + qt); l = S(qt, 16 + qt)
        for r in range(4):
            e(f"v_cndmask_b32 v{f+r}, v{t4}, v{f+r}, s[{52+2*r}:{53+2*r}]")
            e(f"v_cndmask_b32 v{l+r}, v{l+r}, v{t4}, s[{52+2*r}:{53+2*r}]")
    Lsk = k.label("nomask")
    e(f"s_cmp_ge_u32 s41, 2\ns_cbranch_scc1 {Lsk}")
    e(f"s_sub_u32 s51, 256, s50\ns_lshr_b32 s51, s51, 4")
    for bp in range(17):
        Lb = k.label("vb")
        e(f"s_cmp_le_u32 s51, {bp}\ns_cbranch_scc1 {Lb}")
        for qt in range(2):
            if (qt == 0 and bp <= 16) or (qt == 1 and bp >= 1):
                for r in range(4): e(f"v_mov_b32 v{S(qt,bp)+r}, v{t4}")
        e(f"{Lb}:")
    e(f"{Lsk}:")
    C = 0.17677669529663687 * 1.4426950408889634
    import struct
    cbits = struct.unpack("<I", struct.pack("<f", C))[0]
    e(f"s_mov_b32 s60, {cbits}\ns_mov_b32 s61, {cbits}")
    OA = lambda qt, dt: 200 + (qt * 2 + dt) * 4
    vM = [216, 218]; vL = [220, 222]
    for qt in range(2):
        regs = [S(qt, b + qt) + r for b in range(17) for r in range(4)]
        m = vM[qt]
        e(f"v_max3_f32 v{m}, v{regs[0]}, v{regs[1]}, v{regs[2]}")
        i = 3
        while i + 1 < len(regs):
            e(f"v_max3_f32 v{m}, v{m}, v{regs[i]}, v{regs[i+1]}"); i += 2
        if i < len(regs): e(f"v_max_f32 v{m}, v{m}, v{regs[i]}")
        e(f"v_mov_b32 v{m+1}, v{m}\ns_nop 1\nv_permlane16_swap_b32 v{m+1}, v{m}\ns_nop 1\nv_max_f32 v{m}, v{m}, v{m+1}")
        e(f"v_mov_b32 v{m+1}, v{m}\ns_nop 1\nv_permlane32_swap_b32 v{m+1}, v{m}\ns_nop 1\nv_max_f32 v{m}, v{m}, v{m+1}")
        e(f"v_mul_f32 v{m}, s60, v{m}")
        e(f"v_sub_f32 v{m}, 0, v{m}")
        e(f"v_mov_b32 v{m+1}, v{m}")
        for b in range(17):
            a = S(qt, b + qt)
            e(f"v_pk_fma_f32 v[{a}:{a+1}], v[{a}:{a+1}], s[60:61], v[{m}:{m+1}]")
            e(f"v_pk_fma_f32 v[{a+2}:{a+3}], v[{a+2}:{a+3}], s[60:61], v[{m}:{m+1}]")
        for x in regs: e(f"v_exp_f32 v{x}, v{x}")
        l = vL[qt]
        e("s_nop 0")
        e(f"v_pk_add_f32 v[{l}:{l+1}], v[{regs[0]}:{regs[1]}], v[{regs[2]}:{regs[3]}]")
        for b in range(1, 17):
            a = S(qt, b + qt)
            e(f"v_pk_add_f32 v[{l}:{l+1}], v[{l}:{l+1}], v[{a}:{a+1}]")
            e(f"v_pk_add_f32 v[{l}:{l+1}], v[{l}:{l+1}], v[{a+2}:{a+3}]")
        e(f"v_add_f32 v{l}, v{l}, v{l+1}")
        e(f"v_mov_b32 v{l+1}, v{l}\ns_nop 1\nv_permlane16_swap_b32 v{l+1}, v{l}\ns_nop 1\nv_add_f32 v{l}, v{l}, v{l+1}")
        e(f"v_mov_b32 v{l+1}, v{l}\ns_nop 1\nv_permlane32_swap_b32 v{l+1}, v{l}\ns_nop 1\nv_add_f32 v{l}, v{l}, v{l+1}")
        e(f"v_rcp_f32 v{l}, v{l}")
        for p in range(9):
            a = S(qt, 2 * p); b2 = S(qt, 2 * p + 1)
            va = (qt == 0) or (2 * p >= 1)
            vb = (qt == 1) or (2 * p + 1 <= 16)
            if va:
                e(f"v_cvt_pk_bf16_f32 v{a}, v{a}, v{a+1}")
                e(f"v_cvt_pk_bf16_f32 v{a+1}, v{a+2}, v{a+3}")
            else:
                e(f"v_mov_b32 v{a}, 0\nv_mov_b32 v{a+1}, 0")
            if vb:
                e(f"v_cvt_pk_bf16_f32 v{a+2}, v{b2}, v{b2+1}")
                e(f"v_cvt_pk_bf16_f32 v{a+3}, v{b2+2}, v{b2+3}")
            else:
                e(f"v_mov_b32 v{a+2}, 0\nv_mov_b32 v{a+3}, 0")
    e("s_nop 1")
    nrd = 12
    for p in range(9):
        if p + 3 < 9:
            pass
        later = (min(p + 2, 8) - p) * 4
        e(f"s_waitcnt lgkmcnt({later})")
        for qt in range(2):
            for dt in range(2):
                a = S(qt, 2 * p); o = OA(qt, dt)
                c = "0" if p == 0 else f"v[{o}:{o+3}]"
                e(f"v_mfma_f32_16x16x32_bf16 v[{o}:{o+3}], v[{VF(p,dt)}:{VF(p,dt)+3}], v[{a}:{a+3}], {c}")
        if p + 3 < 9:
            for x in rdV(p + 3): e(x)
    if stamp is not None: stamp_mid(k, 1)
    e("s_nop 7")
    e(f"""
    v_mbcnt_lo_u32_b32 v{t3}, -1, 0
    v_mbcnt_hi_u32_b32 v{t3}, -1, v{t3}
    v_and_b32 v{t0}, 15, v{t3}
    v_add_u32 v{t0}, s50, v{t0}
    v_lshlrev_b32 v{t0}, 11, v{t0}
    v_lshrrev_b32 v{t1}, 4, v{t3}
    v_and_b32 v{t2}, 1, v{t1}
    v_lshrrev_b32 v{t1}, 1, v{t1}
    v_lshl_add_u32 v{t0}, v{t2}, 5, v{t0}
    v_lshl_add_u32 v{t0}, v{t1}, 4, v{t0}
    s_lshl_b32 s3, s42, 1
    s_add_u32 s3, s3, s43
    s_lshl_b32 s3, s3, 6
    v_add_u32 v{t0}, s3, v{t0}
    """)
    for qt in range(2):
        l = vL[qt]; Pq = 224 + 4 * qt
        for dt in range(2):
            o = OA(qt, dt)
            for r in range(4): e(f"v_mul_f32 v{o+r}, v{o+r}, v{l}")
            e(f"v_cvt_pk_bf16_f32 v{Pq+2*dt}, v{o}, v{o+1}")
            e(f"v_cvt_pk_bf16_f32 v{Pq+2*dt+1}, v{o+2}, v{o+3}")
        e("s_nop 1")
        e(f"v_permlane16_swap_b32 v{Pq}, v{Pq+2}")
        e(f"v_permlane16_swap_b32 v{Pq+1}, v{Pq+3}")
        e(f"s_mov_b32 s3, {qt*16*2048}")
        e(f"buffer_store_dwordx4 v[{Pq}:{Pq+3}], v{t0}, s[12:15], s3 offen")
    if stamp is not None: stamp_mid(k, 2)
    epilogue_end(k, stamp)
    return k

def gu_kernel(name, opt, stamp=None):
    WS_X = WS_HN; WS_H = WS_HID
    NV = 160
    k = Kernel(name, 256, 512, 98304 + 2 * 28704, vgpr=NV, agpr=88, sgpr=102)
    e = k.e
    XB = 32768; XRING = 3; WBASE = XB * XRING
    UOFF = 14336 + 16; WB = 28704
    ACC = lambda tf, t: (t * 4 + tf) * 4
    vDX = list(range(112, 116))
    vDW = list(range(116, 120))
    vXr0, vXr1, vWr, vWm = 120, 121, 122, 123
    vT = list(range(124, 160))
    AX = lambda buf, tf: buf * 16 + tf * 4
    AW = lambda buf, t: 32 + buf * 28 + t * 4
    sXsrd, sGsrd, sUsrd, sMsrd, sHsrd = 8, 12, 16, 20, 24
    sKX, sKW = 28, 29
    sXdst, sWdst = 30, 31
    sDW = 38; sIt = 39; sW = 40; sM0 = 41; sF0 = 42; sWm = 43; sWn = 44
    sXrd = 45; sWrd = 46
    MAP = "s_and_b32 s5, s3, 1\ns_lshl_b32 s5, s5, 2\ns_and_b32 s6, s4, 3\ns_add_u32 s5, s5, s6\ns_lshr_b32 s6, s3, 1\ns_lshl_b32 s6, s6, 3\ns_lshr_b32 s7, s4, 2\ns_add_u32 s6, s6, s7"
    prologue(k, 256, stamp)
    e(f"""
    s_mov_b32 s32, s{PWG}
    s_mov_b32 s33, s{PWG+1}
    s_mov_b32 s34, s{PWU}
    s_mov_b32 s35, s{PWU+1}
    s_mov_b32 s36, s{PWS}
    s_mov_b32 s37, s{PWS+1}
    s_and_b32 s3, s2, 7
    s_lshr_b32 s4, s2, 3
    {MAP}
    s_lshl_b32 s{sM0}, s5, 8
    s_mul_i32 s{sF0}, s6, 112
    s_lshr_b32 s{sWm}, s{sW}, 1
    s_and_b32 s{sWn}, s{sW}, 1
    s_add_u32 s{sXsrd}, s36, {WS_X}
    s_addc_u32 s{sXsrd+1}, s37, 0
    s_mov_b32 s{sXsrd+2}, {2048*2048}
    s_mov_b32 s{sXsrd+3}, 0x20000
    s_mov_b32 s{sGsrd}, s32
    s_mov_b32 s{sGsrd+1}, s33
    s_mov_b32 s{sGsrd+2}, {1024*7168}
    s_mov_b32 s{sGsrd+3}, 0x20000
    s_mov_b32 s{sUsrd}, s34
    s_mov_b32 s{sUsrd+1}, s35
    s_mov_b32 s{sUsrd+2}, {1024*7168}
    s_mov_b32 s{sUsrd+3}, 0x20000
    s_cmp_ge_u32 s{sW}, 6
    s_cselect_b32 s{sMsrd}, s34, s32
    s_cselect_b32 s{sMsrd+1}, s35, s33
    s_mov_b32 s{sMsrd+2}, {1024*7168}
    s_mov_b32 s{sMsrd+3}, 0x20000
    s_add_u32 s{sHsrd}, s36, {WS_H}
    s_addc_u32 s{sHsrd+1}, s37, 0
    s_mov_b32 s{sHsrd+2}, {2048*7168}
    s_mov_b32 s{sHsrd+3}, 0x20000
    """)
    t0, t1, t2, t3 = vT[0], vT[1], vT[2], vT[3]
    e(f"""
    v_lshrrev_b32 v{t0}, 3, v0
    v_lshrrev_b32 v{t1}, 4, v0
    v_and_b32 v{t2}, 7, v0
    v_xor_b32 v{t2}, v{t2}, v{t1}
    s_lshl_b32 s3, s{sW}, 5
    s_add_u32 s3, s3, s{sM0}
    v_add_u32 v{t0}, s3, v{t0}
    v_lshlrev_b32 v{t0}, 11, v{t0}
    v_lshl_add_u32 v{t0}, v{t2}, 4, v{t0}
    v_xor_b32 v{t1}, 64, v{t0}
    """)
    for q in range(4):
        src = t0 if q % 2 == 0 else t1
        e(f"v_add_u32 v{vDX[q]}, {q*16384 - 1024*q}, v{src}")
    sWo = [47, 48, 49, 50]
    e(f"s_lshl_b32 s4, s{sF0}, 1")
    e(f"s_mov_b32 s5, 4682")
    for q in range(4):
        e(f"""
        s_add_u32 s3, s{sW}, {8*q}
        s_cmp_ge_u32 s3, 14
        s_cselect_b32 s6, 14, 0
        s_cselect_b32 s7, {UOFF}, 0
        s_sub_u32 s3, s3, s6               ; q'
        s_lshl_b32 s6, s3, 10
        s_add_u32 s{sWo[q]}, s6, s7
        s_lshl_b32 s3, s3, 6
        v_add_u32 v{t0}, s3, v0            ; c
        v_mul_u32_u24 v{t1}, s5, v{t0}
        v_lshrrev_b32 v{t1}, 16, v{t1}     ; rho
        v_mul_u32_u24 v{t2}, 14, v{t1}
        v_sub_u32 v{t2}, v{t0}, v{t2}      ; j
        v_and_b32 v{t3}, 4, v{t1}
        v_lshlrev_b32 v{t3}, 1, v{t3}
        v_and_b32 v{t0}, 8, v{t1}
        v_lshrrev_b32 v{t0}, 1, v{t0}
        v_or_b32 v{t3}, v{t3}, v{t0}
        v_and_b32 v{t1}, 0x33, v{t1}
        v_or_b32 v{t1}, v{t1}, v{t3}       ; k
        v_mul_u32_u24 v{t1}, 7168, v{t1}
        v_lshl_add_u32 v{t1}, v{t2}, 4, v{t1}
        v_add_u32 v{vDW[q]}, s4, v{t1}
        """)
    e(f"""
    v_and_b32 v{t0}, 15, v0
    v_lshrrev_b32 v{t1}, 4, v0
    v_lshrrev_b32 v{t2}, 1, v{t0}
    v_xor_b32 v{t2}, v{t2}, v{t1}
    s_lshl_b32 s3, s{sWm}, 6
    v_add_u32 v{t0}, s3, v{t0}
    v_lshlrev_b32 v{t0}, 7, v{t0}
    v_lshl_add_u32 v{vXr0}, v{t2}, 4, v{t0}
    v_xor_b32 v{vXr1}, 64, v{vXr0}
    v_lshrrev_b32 v{t0}, 5, v0
    v_lshlrev_b32 v{t0}, 4, v{t0}
    v_bfe_u32 v{t1}, v0, 4, 1
    v_lshl_add_u32 v{t0}, v{t1}, 2, v{t0}
    v_bfe_u32 v{t1}, v0, 2, 2
    v_add_u32 v{t0}, v{t0}, v{t1}
    v_mul_u32_u24 v{t0}, 224, v{t0}          ; rho*224
    s_mul_i32 s3, s{sWn}, 112
    s_add_u32 s3, s3, {WBASE}
    v_add_u32 v{t0}, s3, v{t0}
    v_and_b32 v{t1}, 3, v0                   ; c
    v_lshl_add_u32 v{vWr}, v{t1}, 3, v{t0}
    v_and_b32 v{t2}, 1, v{t1}
    v_lshl_add_u32 v{t0}, v{t2}, 3, v{t0}
    v_lshrrev_b32 v{t2}, 1, v{t1}
    v_mul_u32_u24 v{t2}, {UOFF}, v{t2}
    v_add_u32 v{t0}, v{t0}, v{t2}
    v_add_u32 v{vWm}, 96, v{t0}
    s_lshl_b32 s{sXdst}, s{sW}, 12           ; w*4096
    s_mov_b32 s{sWdst}, {WBASE}
    s_mov_b32 s{sKX}, 0
    s_mov_b32 s{sKW}, 0
    s_mov_b32 s{sDW}, {WB}
    """)
    srdq = [sGsrd, sMsrd, sUsrd, sUsrd]
    def dmaX(q):
        r = []
        if q == 0: r.append(f"s_mov_b32 m0, s{sXdst}")
        r.append(f"buffer_load_dwordx4 v{vDX[q]}, s[{sXsrd}:{sXsrd+3}], s{sKX} offen offset:{1024*q} lds")
        return r
    skipn = [0]
    def dmaW(q):
        r = [f"s_add_u32 m0, s{sWdst}, s{sWo[q]}"]
        ins = f"buffer_load_dwordx4 v{vDW[q]}, s[{srdq[q]}:{srdq[q]+3}], s{sKW} offen lds"
        if q == 3:
            skipn[0] += 1
            l = f"L_skip_{name}_{skipn[0]}"
            r = [f"s_cmp_ge_u32 s{sW}, 4", f"s_cbranch_scc1 {l}"] + r + [ins, f"{l}:"]
        else:
            r.append("s_nop 0") if opt.get("m0nop", 0) else None
            r.append(ins)
        if q == 3:
            r.insert(3, "s_nop 0")
        else:
            r.insert(1, "s_nop 0")
        return r
    def advX():
        return [f"s_add_u32 s{sKX}, s{sKX}, 128",
                f"s_add_u32 s{sXdst}, s{sXdst}, {XB}",
                f"s_cmp_ge_u32 s{sXdst}, {XB*XRING}",
                f"s_cselect_b32 s3, {XB*XRING}, 0",
                f"s_sub_u32 s{sXdst}, s{sXdst}, s3"]
    def advW():
        return [f"s_add_u32 s{sKW}, s{sKW}, {64*7168}",
                f"s_add_u32 s{sWdst}, s{sWdst}, s{sDW}",
                f"s_sub_u32 s{sDW}, 0, s{sDW}"]
    def dmaX_safe(q):
        r = dmaX(q)
        if len(r) == 2: r.insert(1, "s_nop 0")
        return r
    for st in range(2):
        for q in range(4):
            for x in dmaX_safe(q): e(x)
        for x in advX(): e(x)
        for q in range(4):
            for x in dmaW(q): e(x)
        for x in advW(): e(x)
    for i in range(112): e(f"v_mov_b32 v{i}, 0")
    e(f"s_mov_b32 s{sXrd}, 0")
    e(f"s_mov_b32 s{sWrd}, {WB}")
    def rdX(buf, s, tf):
        return f"ds_read_b128 a[{AX(buf,tf)}:{AX(buf,tf)+3}], v{vXr0 if s == 0 else vXr1} offset:{tf*2048}"
    def rdW(buf, s, t, h):
        koff = s * 32 * 224 + h * 8 * 224
        b = AW(buf, t) + 2 * h
        if t == 6: return f"ds_read_b64_tr_b16 a[{b}:{b+1}], v{vWm} offset:{koff}"
        off = (UOFF if t >= 3 else 0) + (t % 3) * 32 + koff
        return f"ds_read_b64_tr_b16 a[{b}:{b+1}], v{vWr} offset:{off}"
    def reads(buf, s):
        r = [rdX(buf, s, tf) for tf in range(4)]
        for t in range(7):
            r += [rdW(buf, s, t, 0), rdW(buf, s, t, 1)]
        return r
    def rotX():
        return [f"s_add_u32 s{sXrd}, s{sXrd}, {XB}",
                f"s_cmp_ge_u32 s{sXrd}, {XB*XRING}",
                f"s_cselect_b32 s3, {XB*XRING}, 0",
                f"s_sub_u32 s{sXrd}, s{sXrd}, s3",
                f"s_sub_u32 s3, {XB}, s3",
                f"v_add_u32 v{vXr0}, s3, v{vXr0}",
                f"v_add_u32 v{vXr1}, s3, v{vXr1}"]
    def rotW():
        return [f"v_add_u32 v{vWr}, s{sWrd}, v{vWr}",
                f"v_add_u32 v{vWm}, s{sWrd}, v{vWm}",
                f"s_sub_u32 s{sWrd}, 0, s{sWrd}"]
    e("s_waitcnt vmcnt(7)")
    e("s_barrier")
    if stamp is not None: stamp_mid(k, 0)
    for x in reads(0, 0): e(x)
    e("s_waitcnt lgkmcnt(0)")
    def mfmas(buf):
        r = []
        order = [(t, tf if t % 2 == 0 else 3 - tf) for t in range(7) for tf in range(4)]
        for t, tf in order:
            a = ACC(tf, t)
            r.append(f"v_mfma_f32_16x16x32_bf16 v[{a}:{a+3}], a[{AW(buf,t)}:{AW(buf,t)+3}], a[{AX(buf,tf)}:{AX(buf,tf)+3}], v[{a}:{a+3}]")
        return r
    def interleave(ms, fill):
        for i, m in enumerate(ms):
            e(m)
            for x in fill.get(i, []): e(x)
    def place(fill, items, start, end):
        n = len(items)
        for i, it in enumerate(items):
            g = start + (i * (end - start)) // n
            fill.setdefault(g, []).extend(it if isinstance(it, list) else [it])
    RD_END = opt.get("rd_end", 22)
    def iteration(dma, last, vm):
        fill = {}
        place(fill, reads(1, 1), 0, RD_END)
        if dma:
            place(fill, [dmaX_safe(q) for q in range(4)], opt.get("xs", 1), opt.get("xe", 24))
            fill.setdefault(25, []).extend(advX())
        interleave(mfmas(0), fill)
        e(f"s_waitcnt vmcnt({vm}) lgkmcnt(0)")
        e("s_barrier")
        fill = {}
        if not last:
            fill.setdefault(0, []).extend(rotX() + rotW())
            place(fill, reads(0, 0), 1, RD_END)
        if dma:
            place(fill, [dmaW(q) for q in range(4)], opt.get("ws", 1), opt.get("we", 16))
            fill.setdefault(26, []).extend(advW())
        interleave(mfmas(1), fill)
        if not last: e("s_waitcnt lgkmcnt(0)")
    if opt.get("prio"):
        e(f"s_cmp_ge_u32 s{sW}, 4")
        e(f"s_cbranch_scc0 L_np_{name}")
        e("s_setprio 1")
        e(f"L_np_{name}:")
    e(f"s_mov_b32 s{sIt}, 0")
    L = k.label("loop")
    e(f"{L}:")
    iteration(True, False, 4)
    e(f"""
    s_add_u32 s{sIt}, s{sIt}, 1
    s_cmp_lt_u32 s{sIt}, 14
    s_cbranch_scc1 {L}
    """)
    iteration(False, False, 0)
    iteration(False, True, 0)
    if stamp is not None: stamp_mid(k, 1)
    vL = vXr0
    vA, vB = vDX[0], vDX[1]
    e(f"""
    s_nop 7
    v_mbcnt_lo_u32_b32 v{vL}, -1, 0
    v_mbcnt_hi_u32_b32 v{vL}, -1, v{vL}
    v_and_b32 v{t0}, 15, v{vL}
    s_lshl_b32 s3, s{sWm}, 6
    s_add_u32 s3, s3, s{sM0}
    v_add_u32 v{t0}, s3, v{t0}
    s_mov_b32 s4, 7168
    v_mul_lo_u32 v{t0}, v{t0}, s4
    s_mul_i32 s4, s{sWn}, 56
    s_add_u32 s4, s4, s{sF0}
    s_lshl_b32 s4, s4, 1
    v_add_u32 v{t0}, s4, v{t0}                ; + (f0 + 56 wn)*2
    v_lshrrev_b32 v{t1}, 4, v{vL}             ; g
    v_and_b32 v{t2}, 1, v{t1}
    v_lshrrev_b32 v{t3}, 1, v{t1}
    v_lshl_add_u32 v{vA}, v{t3}, 4, v{t0}
    v_lshl_add_u32 v{vA}, v{t2}, 5, v{vA}
    """)
    def prod(tf, t):
        g = ACC(tf, t); u = ACC(tf, t + 3)
        e(f"v_pk_mul_f32 v[{g}:{g+1}], v[{g}:{g+1}], v[{u}:{u+1}]")
        e(f"v_pk_mul_f32 v[{g+2}:{g+3}], v[{g+2}:{g+3}], v[{u+2}:{u+3}]")
    def pack(tf, t, dst):
        g = ACC(tf, t)
        e(f"v_cvt_pk_bf16_f32 v{dst}, v{g}, v{g+1}")
        e(f"v_cvt_pk_bf16_f32 v{dst+1}, v{g+2}, v{g+3}")
    PP = [128, 132, 136, 140, 144, 148]
    pi = 0
    sf = opt.get("stflags", "")
    for tf in range(4):
        P = PP[pi % 6]; pi += 1
        prod(tf, 0); prod(tf, 1); pack(tf, 0, P); pack(tf, 1, P + 2)
        e("s_nop 1")
        e(f"v_permlane16_swap_b32 v{P}, v{P+2}")
        e(f"v_permlane16_swap_b32 v{P+1}, v{P+3}")
        e(f"s_mov_b32 s3, {tf*16*7168}")
        e(f"buffer_store_dwordx4 v[{P}:{P+3}], v{vA}, s[{sHsrd}:{sHsrd+3}], s3 offen {sf}")
    e(f"""
    v_mul_u32_u24 v{vB}, {16*7168}, v{t2}
    v_add_u32 v{vB}, v{vB}, v{t0}
    v_lshl_add_u32 v{vB}, v{t3}, 4, v{vB}
    """)
    for tf in (0, 2):
        P = PP[pi % 6]; pi += 1
        prod(tf, 2); prod(tf + 1, 2); pack(tf, 2, P); pack(tf + 1, 2, P + 2)
        e("s_nop 1")
        e(f"v_permlane16_swap_b32 v{P}, v{P+2}")
        e(f"v_permlane16_swap_b32 v{P+1}, v{P+3}")
        e(f"s_mov_b32 s3, {tf*16*7168}")
        e(f"buffer_store_dwordx4 v[{P}:{P+3}], v{vB}, s[{sHsrd}:{sHsrd+3}], s3 offen offset:64 {sf}")
    P = PP[pi % 6]; pi += 1
    for pidx, tf in enumerate((0, 2)):
        a = ACC(tf, 6); b = ACC(tf + 1, 6)
        for r in range(4):
            e(f"v_permlane32_swap_b32 v{a+r}, v{b+r}")
        e("s_nop 1")
        e(f"v_pk_mul_f32 v[{a}:{a+1}], v[{a}:{a+1}], v[{b}:{b+1}]")
        e(f"v_pk_mul_f32 v[{a+2}:{a+3}], v[{a+2}:{a+3}], v[{b+2}:{b+3}]")
        e(f"v_cvt_pk_bf16_f32 v{P+2*pidx}, v{a}, v{a+1}")
        e(f"v_cvt_pk_bf16_f32 v{P+2*pidx+1}, v{a+2}, v{a+3}")
    e("s_nop 1")
    e(f"v_permlane16_swap_b32 v{P}, v{P+2}")
    e(f"v_permlane16_swap_b32 v{P+1}, v{P+3}")
    e(f"""
    v_lshl_add_u32 v{t2}, v{t2}, 1, v{t3}
    v_mul_u32_u24 v{t2}, {16*7168}, v{t2}
    v_add_u32 v{t2}, v{t2}, v{t0}
    buffer_store_dwordx4 v[{P}:{P+3}], v{t2}, s[{sHsrd}:{sHsrd+3}], 0 offen offset:96 {sf}
    """)
    if stamp is not None: stamp_mid(k, 2)
    epilogue_end(k, stamp)
    return k
```

```python
import sys
from lib2 import *
opt = eval(sys.argv[2]) if len(sys.argv) > 2 else {}
st = opt.get("stamp", False)
S = lambda i: i if st else None
ks = [ln_kernel("ln1_kernel", "x", WS_XN, S(0)),
      lc_gemm("qkv_kernel", "qkv", opt, S(1)),
      attn_kernel("attn_kernel", opt, S(2)),
      lc_gemm("wo_kernel", "wo", opt, S(3)),
      ln_kernel("ln2_kernel", WS_H1, WS_HN, S(4)),
      gu_kernel("gu_kernel", opt, S(5)),
      lc_gemm("down_kernel", "down", opt, S(6))]
open(sys.argv[1], "w").write(build(ks))
```
